```python
import torch

def _softmax(x, axis=-1):
    return torch.softmax(x, dim=axis)
def _gelu(x):
    return torch.nn.functional.gelu(x, approximate="tanh")
def _silu(x):
    return torch.nn.functional.silu(x)
def _sigmoid(x):
    return torch.sigmoid(x)
def _layernorm(x, axis=-1, eps=1e-5):
    m = x.mean(dim=axis, keepdim=True)
    v = x.var(dim=axis, keepdim=True, unbiased=False)
    return (x - m) / torch.sqrt(v + eps)
def _scatter_add(tgt, idx, src, axis=0):
    return tgt.clone().index_add_(axis, idx, src)
def _segment_sum(src, seg, n):
    out = torch.zeros((n,) + src.shape[1:], dtype=src.dtype)
    return out.index_add_(0, seg, src)
def _pad(x, pw):
    flat = tuple(v for pair in reversed(pw) for v in pair)
    return torch.nn.functional.pad(x, flat)

kernel_name = 'recurrent_scan__sliding_block_cached__geglu_ffn__prompt'

def setup_inputs():

    _w = (lambda a: (lambda t: t.to(torch.bfloat16) if t.is_floating_point() else t)(torch.as_tensor(a)))
    def _A_setup():
        B, Sq, D = 1, 2048, 576
        Hq, Hkv, Sk, Dh = 32, 16, 2048, 128
        assert Hq % Hkv == 0, (Hq, Hkv)
        return {
            "x": _w((lambda *s: torch.randn(*s, dtype=torch.bfloat16) * 0.05)(B, Sq, D)),
            "k_cache": _w((lambda *s: torch.randn(*s, dtype=torch.bfloat16) * 0.8)(B, Hkv, Sk, Dh)),
            "v_cache": _w((lambda *s: torch.randn(*s, dtype=torch.bfloat16) * 0.2)(B, Hkv, Sk, Dh)),
            "wq": _w((lambda *s: torch.randn(*s, dtype=torch.bfloat16) * 0.8)(D, Hq * Dh) * (D ** -0.5)),
            "wo": _w((lambda *s: torch.randn(*s, dtype=torch.bfloat16) * 0.2)(Hq * Dh, D) * ((Hq * Dh) ** -0.5)),
        }
    _A_in = _A_setup()

    def _B_setup():
        B, S, D, F = 1, 2048, 576, 4608
        return {
            "x": _w((lambda *s: torch.randn(*s, dtype=torch.bfloat16) * 0.05)(B, S, D)),
            "w_gate": _w((lambda *s: torch.randn(*s, dtype=torch.bfloat16) * 0.1)(D, F)),
            "w_up": _w((lambda *s: torch.randn(*s, dtype=torch.bfloat16) * 0.1)(D, F)),
            "w_down": _w((lambda *s: torch.randn(*s, dtype=torch.bfloat16) * 0.1)(F, D)),
        }
    _B_in = _B_setup()

    return {
        "A_x": _A_in["x"],
        "A_k_cache": _A_in["k_cache"],
        "A_v_cache": _A_in["v_cache"],
        "A_wq": _A_in["wq"],
        "A_wo": _A_in["wo"],
        "B_x": _B_in["x"],
        "B_w_gate": _B_in["w_gate"],
        "B_w_up": _B_in["w_up"],
        "B_w_down": _B_in["w_down"],
    }

def reference(A_x, A_k_cache, A_v_cache, A_wq, A_wo, B_x, B_w_gate, B_w_up, B_w_down):
    def _A_ref(x, k_cache, v_cache, wq, wo):
        B, Sq, D = x.shape
        Hq, Dh = 32, 128
        Hkv, Sk = k_cache.shape[1], k_cache.shape[2]
        W = min(4096, max(256, Sk // 4))
        rep = Hq // Hkv
        q = (lambda x, *d: x.permute(*d))((x @ wq).reshape(B, Sq, Hq, Dh), 0, 2, 1, 3)
        k = (lambda x, n, axis: torch.repeat_interleave(x, n, dim=axis))(k_cache[:, :, Sk - W:, :], rep, axis=1)
        v = (lambda x, n, axis: torch.repeat_interleave(x, n, dim=axis))(v_cache[:, :, Sk - W:, :], rep, axis=1)
        scores = torch.einsum("bhqd,bhkd->bhqk", q, k) * (Dh ** -0.5)
        p = _softmax(scores, axis=-1)
        o = torch.einsum("bhqk,bhkd->bhqd", p, v)
        return (lambda x, *d: x.permute(*d))(o, 0, 2, 1, 3).reshape(B, Sq, Hq * Dh) @ wo

    def _B_ref(x, w_gate, w_up, w_down):
        return (_gelu(x @ w_gate) * (x @ w_up)) @ w_down

    x = A_x
    xn = _layernorm(x, axis=-1)
    s = _A_ref(xn, A_k_cache, A_v_cache, A_wq, A_wo)
    g = _silu(_B_ref(xn, B_w_gate, B_w_up, B_w_down))
    return x + s * g
```

```python
import re

class Ins:
    __slots__ = ('text', 'kind', 'rd', 'wr', 'units', 'meta', 'srcc')
    def __init__(self, text, kind, rd=(), wr=(), units=1, meta=None, srcc=()):
        self.text = text; self.kind = kind
        self.rd = frozenset(rd); self.wr = frozenset(wr)
        self.units = units; self.meta = meta or {}; self.srcc = frozenset(srcc)
    def __repr__(self): return self.text

def regs(kind, base, n=1): return [(kind, base + i) for i in range(n)]
def rt(kind, base, n=1):
    return '%s%d' % (kind, base) if n == 1 else '%s[%d:%d]' % (kind, base, base + n - 1)
class Reg:
    __slots__ = ('k', 'b', 'n')
    def __init__(self, k, b, n=1): self.k = k; self.b = b; self.n = n
    def __str__(self): return rt(self.k, self.b, self.n)
    def regs(self): return regs(self.k, self.b, self.n)
    def sub(self, o, n=1): return Reg(self.k, self.b + o, n)
    def __getitem__(self, i): return Reg(self.k, self.b + i, 1)
def V(b, n=1): return Reg('v', b, n)
def A(b, n=1): return Reg('a', b, n)
def S(b, n=1): return Reg('s', b, n)

def _rd(*ops):
    r = []
    for o in ops:
        if isinstance(o, Reg): r += o.regs()
        elif isinstance(o, str) and o == 'vcc': r += [('s', 'vcc')]
        elif isinstance(o, str) and o == 'm0': r += [('s', 'm0')]
    return r
def _t(o):
    if isinstance(o, Reg): return str(o)
    if isinstance(o, int):
        return str(o) if -16 <= o <= 64 else '0x%x' % (o & 0xffffffff)
    if isinstance(o, float): return repr(o)
    return str(o)

def mfma(d, a, b, c=None, zero=False):
    if zero:
        name = 'Z%s%s%s' % (d.k, a.k, b.k); crd = []
    else:
        name = 'M%s%s%s' % (d.k, a.k, b.k); crd = d.regs()
    text = '%s %d,%d,%d' % (name, d.b, a.b, b.b)
    return Ins(text, 'mfma', rd=a.regs() + b.regs() + crd, wr=d.regs(), units=2, srcc=crd)
def valu(op, d, *src, trans=False, extra_wr=(), extra_rd=()):
    text = '%s %s' % (op, ', '.join([_t(d)] + [_t(s) for s in src]))
    return Ins(text, 'trans' if trans else 'valu', rd=_rd(*src) + list(extra_rd), wr=_rd(d) + list(extra_wr), units=2 if trans else 1)
def fmac(op, d, *src):
    text = '%s %s' % (op, ', '.join([_t(d)] + [_t(s) for s in src]))
    return Ins(text, 'valu', rd=_rd(d, *src), wr=_rd(d))
def swap(op, x, y):
    return Ins('%s %s, %s' % (op, x, y), 'valu', rd=_rd(x, y), wr=_rd(x, y), meta={'permlane': True})
def accw(a, v): return Ins('v_accvgpr_write_b32 %s, %s' % (a, _t(v)), 'valu', rd=_rd(v), wr=_rd(a))
def accr(v, a): return Ins('v_accvgpr_read_b32 %s, %s' % (v, a), 'valu', rd=_rd(a), wr=_rd(v))
def salu(op, d, *src, scc=True):
    text = '%s %s' % (op, ', '.join([_t(d)] + [_t(s) for s in src]))
    return Ins(text, 'salu', rd=_rd(*src), wr=_rd(d))
def scmp(op, a, b): return Ins('%s %s, %s' % (op, _t(a), _t(b)), 'salu', rd=_rd(a, b))
def raw(text, kind='other', rd=(), wr=(), **meta): return Ins(text, kind, rd=rd, wr=wr, meta=meta)
def dstr(d, addr, off):
    assert 0 <= off < 65536
    nm = 'T%s' % d.k
    return Ins('%s %d,%d,%d' % (nm, d.b, addr.b, off), 'ds', rd=addr.regs(), wr=d.regs(), meta={'lds': True})
def dsb128(d, addr, off):
    assert 0 <= off < 65536
    nm = 'B%s' % d.k
    return Ins('%s %d,%d,%d' % (nm, d.b, addr.b, off), 'ds', rd=addr.regs(), wr=d.regs(), meta={'lds': True})
def dma(voff, srd, soff, imm, tag):
    text = 'DMA %d,%d,%d,%d' % (voff.b, srd.b, soff.b, imm)
    return Ins(text, 'vmem', rd=voff.regs() + srd.regs() + soff.regs() + [('s', 'm0')], meta={'vm': True, 'dma': tag})
def bufload(d, voff, srd, soff, imm, width=4, op=None):
    op = op or {1: 'buffer_load_dword', 2: 'buffer_load_dwordx2', 4: 'buffer_load_dwordx4'}[width]
    text = '%s %s, %s, %s, %s offen offset:%d' % (op, d, voff, srd, _t(soff), imm)
    return Ins(text, 'vmem', rd=_rd(voff, srd, soff), wr=d.regs(), meta={'vm': True})
def bufstore(d, voff, srd, soff, imm, width=4, mods=''):
    op = {1: 'buffer_store_dword', 2: 'buffer_store_dwordx2', 4: 'buffer_store_dwordx4'}[width]
    text = '%s %s, %s, %s, %s offen offset:%d%s' % (op, d, voff, srd, _t(soff), imm, mods)
    return Ins(text, 'vmem', rd=_rd(d, voff, srd, soff), meta={'vm': True, 'store': d.regs(), 'wide': width >= 3})
def wait_vm(tag): return Ins('WAITVM', 'wait', meta={'waitvm': tag})
def wait_lds(upto): return Ins('WAITLDS', 'wait', meta={'waitlds': upto})
def waitcnt(vm=None, lgkm=None):
    p = []
    if vm is not None: p.append('vmcnt(%d)' % vm)
    if lgkm is not None: p.append('lgkmcnt(%d)' % lgkm)
    return Ins('s_waitcnt ' + ' '.join(p), 'wait', meta={'cnt': (vm, lgkm)})
def barrier(tag=None): return Ins('s_barrier', 'barrier', meta={'bar': tag})
def nop(n): return Ins('s_nop %d' % n, 'nop', meta={'n': n})
def label(name): return Ins(name + ':', 'label', units=0)
def comment(t): return Ins('; ' + t, 'label', units=0)

MACROS = []
def _mk_macros():
    for d in 'va':
        for a in 'va':
            for b in 'va':
                MACROS.append('.macro M%s%s%s d,a,b\nv_mfma_f32_16x16x32_bf16 %s[\\d:\\d+3], %s[\\a:\\a+3], %s[\\b:\\b+3], %s[\\d:\\d+3]\n.endm' % (d, a, b, d, a, b, d))
                MACROS.append('.macro Z%s%s%s d,a,b\nv_mfma_f32_16x16x32_bf16 %s[\\d:\\d+3], %s[\\a:\\a+3], %s[\\b:\\b+3], 0\n.endm' % (d, a, b, d, a, b))
    for d in 'va':
        MACROS.append('.macro T%s d,r,o\nds_read_b64_tr_b16 %s[\\d:\\d+1], v\\r offset:\\o\n.endm' % (d, d))
        MACROS.append('.macro B%s d,r,o\nds_read_b128 %s[\\d:\\d+3], v\\r offset:\\o\n.endm' % (d, d))
    MACROS.append('.macro DMA v,r,s,o\nbuffer_load_dwordx4 v\\v, s[\\r:\\r+3], s\\s offen offset:\\o lds\n.endm')
_mk_macros()

def pass_waits(ins, age_min=10, stats=None, scalar_loads_ok=True):
    out = []; lds = []; vm = []
    auto_l = auto_v = 0
    def do_lds(k):
        n = len(lds) - 1 - k
        assert n <= 15, n
        out.append(waitcnt(lgkm=n)); del lds[:k + 1]
    def do_vm(k):
        n = len(vm) - 1 - k
        assert n <= 63, n
        out.append(waitcnt(vm=n)); del vm[:k + 1]
    for I in ins:
        m = I.meta
        if 'waitvm' in m:
            tag = m['waitvm']; ks = [k for k, e in enumerate(vm) if e['tag'] == tag]
            if ks: do_vm(max(ks))
            continue
        if 'waitlds' in m:
            need = m['waitlds']; ks = [k for k, e in enumerate(lds) if e['dst'] & need]
            if ks: do_lds(max(ks))
            continue
        if 'cnt' in m:
            v, l = m['cnt']
            if v is not None: del vm[:max(0, len(vm) - v)]
            if l is not None: del lds[:max(0, len(lds) - l)]
            out.append(I); continue
        touched = I.rd | I.wr
        if lds:
            ks = [k for k, e in enumerate(lds) if e['dst'] & touched]
            if ks:
                k = max(ks)
                while k + 1 < len(lds) and len(out) - lds[k + 1]['idx'] >= age_min: k += 1
                do_lds(k); auto_l += 1
        if vm:
            ks = [k for k, e in enumerate(vm) if e['dst'] & touched]
            if ks: do_vm(max(ks)); auto_v += 1
        if I.kind == 'ds':
            if len(lds) >= 15: do_lds(len(lds) - 15); auto_l += 1
            lds.append({'dst': set(I.wr), 'idx': len(out)})
        if m.get('vm'):
            if len(vm) >= 63: do_vm(len(vm) - 63); auto_v += 1
            vm.append({'dst': set(I.wr), 'idx': len(out), 'tag': m.get('dma', m.get('tag'))})
        out.append(I)
    if stats is not None: stats['auto_lds'] = auto_l; stats['auto_vm'] = auto_v
    return out

def pass_hazards(ins, stats=None):
    out = []
    pos = 0
    last = {}
    added = 0
    def note(reg, kind): last.setdefault(reg, {})[kind] = pos
    def dist(reg, kind):
        p = last.get(reg, {}).get(kind)
        return None if p is None else pos - p - 1
    for I in ins:
        if I.kind == 'label':
            out.append(I); continue
        need = 0
        def req(reg, kind, n):
            nonlocal need
            d = dist(reg, kind)
            if d is not None and d < n: need = max(need, n - d)
        k = I.kind
        isvalu = k in ('valu', 'trans')
        if k == 'mfma':
            for r in I.rd:
                req(r, 'valu_w', 2)
                if r in I.srcc and r in I.wr: pass
                else: req(r, 'mfma_w', 8)
            for r in I.wr:
                if r not in I.srcc: req(r, 'mfma_w', 8);
        if isvalu:
            for r in I.rd | I.wr: req(r, 'mfma_w', 8)
            for r in I.wr: req(r, 'mfma_c', 3); req(r, 'store_d', 2)
            if k == 'valu' or True:
                for r in I.rd: req(r, 'trans_w', 1)
            if I.meta.get('permlane'):
                for r in I.rd: req(r, 'valu_w', 2)
            if I.meta.get('readlane'):
                for r in I.rd: req(r, 'valu_w', 1)
            for r in I.rd:
                if r[0] == 's': req(r, 'valu_sw', 2)
        if k in ('ds', 'vmem'):
            for r in I.rd | I.wr: req(r, 'mfma_w', 8)
            for r in I.rd:
                if r[0] == 's': req(r, 'valu_sw', 5)
            if I.meta.get('dma') is not None: req(('s', 'm0'), 'salu_w', 1)
            for r in I.wr: req(r, 'store_d', 1)
        if k == 'salu':
            for r in I.rd:
                if r[0] == 's': req(r, 'valu_sw', 4)
        if need > 0:
            added += 1
            while need > 0:
                n = min(need, 16); out.append(nop(n - 1)); pos += n; need -= n
        out.append(I)
        if k == 'mfma':
            for r in I.wr: note(r, 'mfma_w')
            for r in I.srcc: note(r, 'mfma_c')
        if isvalu:
            for r in I.wr:
                if r[0] == 's': note(r, 'valu_sw')
                else:
                    note(r, 'valu_w')
                    if k == 'trans': note(r, 'trans_w')
        if k == 'salu':
            for r in I.wr: note(r, 'salu_w')
        if I.meta.get('store') and I.meta.get('wide'):
            for r in I.meta['store']: note(r, 'store_d')
        pos += (I.meta['n'] + 1) if k == 'nop' else 1
    if stats is not None: stats['nops'] = added
    return out

class Item:
    __slots__ = ('ins', 'ready', 'dead', 'latest', 'mem')
    def __init__(self, ins, ready=-1, dead=10**9):
        self.ins = ins if isinstance(ins, list) else [ins]
        self.ready = ready; self.dead = dead; self.latest = dead
        self.mem = self.ins[0].kind in ('ds', 'vmem')
    @property
    def units(self): return sum(i.units for i in self.ins)

class Sched:
    def __init__(self, cap=2):
        self.bb = []; self.fixed_mem = {}; self.fixed_post = {}; self.streams = []; self.cap = cap; self.pre = {}
    def add_mfma(self, ins): self.bb.append(ins); return len(self.bb) - 1
    def mem(self, g, ins): self.fixed_mem.setdefault(g, []).append(ins)
    def post(self, g, ins): self.fixed_post.setdefault(g, []).append(ins)
    def stream(self, items, rate=1.5, name='', prio=1):
        nxt = 10**9
        for it in reversed(items):
            it.latest = min(it.dead, nxt)
            nxt = it.latest - it.units / rate
        self.streams.append({'items': items, 'i': 0, 'name': name, 'prio': prio})
    def run(self, stats=None):
        out = []; N = len(self.bb); over = 0; late = 0
        for g in range(-1, N):
            if g >= 0: out.append(self.bb[g])
            memf = list(self.fixed_mem.get(g, [])); post = list(self.fixed_post.get(g, []))
            used = sum(i.units for i in memf) + sum(i.units for i in post)
            cap = self.cap if g >= 0 else 0
            last = (g == N - 1)
            mem = []; rest = []
            while True:
                best = None
                for s in self.streams:
                    if s['i'] >= len(s['items']): continue
                    it = s['items'][s['i']]
                    if it.ready > g and not last: continue
                    forced = it.latest <= g or last
                    fits = used + it.units <= cap
                    if it.mem and rest and not forced: fits = False
                    if not (forced or fits): continue
                    key = (0 if forced else 1, s['prio'], 0 if it.mem else 1, it.latest)
                    if best is None or key < best[0]: best = (key, s, it)
                if best is None: break
                _, s, it = best
                if it.dead < g: late += 1
                (mem if (it.mem and not rest) else rest).extend(it.ins); used += it.units; s['i'] += 1
            if g >= 0 and used > cap: over += used - cap
            out += memf + mem + rest + post
        for s in self.streams: assert s['i'] == len(s['items']), s['name']
        if stats is not None:
            stats['overflow_units'] = stats.get('overflow_units', 0) + over
            stats['late'] = stats.get('late', 0) + late
            stats['mfma'] = stats.get('mfma', 0) + N
        return out

def emit(ins):
    return '\n'.join(i.text for i in ins)
```

```python
from core import *
import math, struct

LOG2E = 1.4426950408889634
def f2u(x): return struct.unpack('<I', struct.pack('<f', x))[0]

sWG, sW = S(2), S(3)
SRD_X, SRD_W1, SRD_W2, SRD_KV, SRD_K, SRD_V, SRD_WS = S(4,4), S(8,4), S(12,4), S(16,4), S(20,4), S(24,4), S(28,4)
sJ, sRB, sROLE = S(32), S(33), S(34)
sM0W = S(35)
sWA1, sWB1, sWKV, sWA2, sWB2, sWB2X = S(36), S(37), S(38), S(39), S(40), S(41)
sT1 = S(43)
sSOFF, sTMP = S(44), S(45)
sMASKHI = S(46)
sPART, sSTO = S(47), S(48)
sGB = S(49)
sM1, sM2 = S(50,2), S(52,2)
sPC = S(54,2)
pX, pK, pV, pWQ, pWO, pWG, pWU, pWD, pWS = S(56,2), S(58,2), S(60,2), S(62,2), S(64,2), S(68,2), S(70,2), S(72,2), S(74,2)
sX1, sX2, sX3 = S(76), S(77), S(78)
sT2, sT3, sT4 = S(79), S(80), S(81)
sLOOP, sLOOP2, sKVB = S(82), S(83), S(84)

vLANE = V(1)
RA = [V(2+i) for i in range(4)]
vT0, vT1 = V(6), V(7)
vNA = [V(8), V(9)]; vNB = [V(10), V(11)]
VOFF = [V(12+i) for i in range(4)]
def X(t, ks): return V(16 + 8*ks + 4*t, 4)

NPOS = 32
LEAD = 12
NSTAGE = 8

class Period:
    def __init__(self, idx, srd, wconst, lit, voffs):
        self.idx = idx; self.srd = srd; self.wconst = wconst; self.lit = lit; self.voffs = voffs
        self.first_read = None
        self.last_use = [-1]*4
        self.total_use = 0; self.done_use = False
    def pos(self, w): return 4*(self.idx % (NPOS//4)) + w

class Role:
    def __init__(self, stage_base):
        self.sc = Sched(); self.frags = []; self.periods = []; self.stage_base = stage_base
        self.stats = {}
    def new_period(self, srd, wconst, lit, voffs):
        p = Period(len(self.periods), srd, wconst, lit, voffs); self.periods.append(p); return p
    def new_frag(self, per, w, kind, areg, off1, off2=None, span=1, epoch=0):
        f = dict(per=per, w=w, kind=kind, areg=areg, off1=off1, off2=off2, first=None, last=None, span=span, epoch=epoch,
                 stage=A(self.stage_base + 4*(len(self.frags) % NSTAGE), 4), idx=len(self.frags))
        self.frags.append(f); return f
    def mf(self, d, f, b, zero=False):
        a = f['stage'] if isinstance(f, dict) else f
        mi = mfma(d, a, b, zero=zero)
        m = self.sc.add_mfma(mi)
        if isinstance(f, dict):
            mi.meta['useper'] = f['per'].idx
            if f['first'] is None: f['first'] = m
            f['last'] = m
            for k in range(f['span']): f['per'].last_use[f['w']+k] = m
            f['per'].total_use += 1
        return m
    def finish_memory(self, first_dma_ready, batch_of):
        sc = self.sc; F = self.frags
        p = -1
        region = {}; self.init_region = {}
        toggles = []; last_read_gap = {}
        for i, f in enumerate(F):
            early = f['first'] - LEAD < 0 and i < NSTAGE
            want = -2 if early else max(f['first'] - LEAD, p)
            if i >= NSTAGE: want = max(want, F[i-NSTAGE]['last'])
            assert want + (1 if f['off2'] is not None else 0) <= f['first'] - 2 or want < 0, (i, want, f['first'])
            areg = f['areg']; key = (areg.b, f['epoch'])
            lds1 = f['per'].pos(f['w'])*4096 + f['off1']
            reg_need = lds1 >> 16
            if key not in region:
                region[key] = reg_need; self.init_region[key] = reg_need; self.first_use_gap = getattr(self, 'first_use_gap', {}); self.first_use_gap[key] = max(want, -1)
            if region[key] != reg_need:
                toggles.append(Item(valu('v_xor_b32', areg, 0x10000, areg), ready=last_read_gap[key], dead=want - 1))
                region[key] = reg_need
            g1 = max(want, -1)
            if f['kind'] == 'tr':
                lds2 = f['per'].pos(f['w'])*4096 + f['off2']
                assert (lds2 >> 16) == reg_need
                g2 = max(want + 1, -1)
                r1 = dstr(f['stage'].sub(0, 2), areg, lds1 & 0xffff); r2 = dstr(f['stage'].sub(2, 2), areg, lds2 & 0xffff)
                r1.meta['rdper'] = r2.meta['rdper'] = f['per'].idx
                r1.meta['ldsaddr'] = lds1; r2.meta['ldsaddr'] = lds2; r1.meta['akey'] = r2.meta['akey'] = key
                sc.mem(g1, r1); sc.mem(g2, r2)
                p = max(want + 2, 0); last_read_gap[key] = g2
            else:
                r1 = dsb128(f['stage'], areg, lds1 & 0xffff); r1.meta['rdper'] = f['per'].idx; r1.meta['ldsaddr'] = lds1; r1.meta['akey'] = key
                sc.mem(g1, r1)
                p = max(want + 1, 0); last_read_gap[key] = g1
            f['rgap'] = g1; f['rgap_last'] = last_read_gap[key]
            per = f['per']
            if per.first_read is None or g1 < per.first_read: per.first_read = g1
        self.last_use_gap = last_read_gap
        toggles.sort(key=lambda it: it.dead)
        for it in toggles: assert it.dead >= it.ready, 'toggle window'
        sc.stream(toggles, rate=2.0, name='toggle', prio=0)
        i = 0
        while i < len(F):
            b = batch_of(F[i])
            grp = [F[i]]
            for f in F[i+1:i+b]:
                if f['rgap_last'] <= F[i]['first'] - 3: grp.append(f)
                else: break
            need = set()
            for f in grp: need |= set(f['stage'].regs())
            sc.post(F[i]['first'] - 1, wait_lds(need))
            i += len(grp)
        bars = []
        for per in self.periods:
            per.bar_gap = per.first_read - 1
            bars.append(per.bar_gap)
        assert bars == sorted(bars), 'periods must be first read in order'
        its = []; pre = []
        occ = {}
        for per in self.periods:
            last = max([occ[per.pos(w)].last_use[w] for w in range(4) if per.pos(w) in occ] + [-2])
            for w in range(4): occ[per.pos(w)] = per
            if last == -2 and per.idx < NPOS//4: ready = first_dma_ready(per.idx)
            else:
                cand = [g for g in bars if g >= last]
                assert cand and cand[0] < per.bar_gap, ('ring too small', per.idx, last, per.bar_gap)
                ready = cand[0] + 1
            ins = [salu('s_add_u32', 'm0', sM0W, 4096*per.pos(0)) if per.pos(0) else salu('s_mov_b32', 'm0', sM0W),
                   salu('s_add_u32', sSOFF, per.wconst, per.lit) if per.lit else salu('s_mov_b32', sSOFF, per.wconst)]
            ins += [dma(per.voffs[r], per.srd, sSOFF, 1024*r, tag=('P', per.idx)) for r in range(4)]
            per.dma_ready = ready
            if ready is None:
                pre += ins
            else:
                dead = per.bar_gap - 6
                assert ready <= dead, ('dma window', per.idx, ready, dead)
                for k, x in enumerate(ins): its.append(Item(x, ready=ready, dead=dead - (len(ins) - 1 - k)))
            if per.bar_gap >= -1:
                sc.post(per.bar_gap, wait_vm(('P', per.idx))); sc.post(per.bar_gap, barrier(per.idx))
        sc.stream(its, rate=1.0, name='dma', prio=0)
        return pre

def lane_pattern_voffs(dst, pitch, natural, tmp0=vT0, tmp1=vT1):
    L = []
    rr, sl = tmp0, tmp1
    L.append(valu('v_lshrrev_b32', rr, 3, vLANE))
    L.append(valu('v_bfe_u32', sl, vLANE, 1, 2))
    L.append(valu('v_bfe_u32', dst[1], vLANE, 4, 1 if natural else 2))
    L.append(valu('v_xor_b32', sl, sl, dst[1]))
    L.append(valu('v_lshlrev_b32', sl, 5, sl))
    L.append(valu('v_and_b32', dst[1], 1, vLANE))
    L.append(valu('v_lshl_or_b32', sl, dst[1], 4, sl))
    L.append(valu('v_mul_u32_u24', rr, pitch, rr))
    L.append(valu('v_add_u32', dst[0], rr, sl))
    step = 8*pitch - 1024
    for r in (1, 2, 3):
        if natural and (r & 1):
            L.append(valu('v_xor_b32', dst[r], 64, dst[0]))
            L.append(valu('v_add_u32', dst[r], r*step, dst[r]))
        else:
            L.append(valu('v_add_u32', dst[r], r*step, dst[0]))
    return L
def lane_pattern_tr(dst, natural, tmp0=vT0, tmp1=vT1, add=0):
    L = []
    a, b = tmp0, tmp1
    if natural:
        L.append(valu('v_lshrrev_b32', a, 4, vLANE)); L.append(valu('v_lshlrev_b32', a, 10, a))
        L.append(valu('v_bfe_u32', b, vLANE, 2, 2)); L.append(valu('v_lshl_or_b32', a, b, 7, a))
        L.append(valu('v_bfe_u32', b, vLANE, 3, 2)); L.append(valu('v_lshl_or_b32', a, b, 5, a))
    else:
        L.append(valu('v_lshrrev_b32', a, 5, vLANE)); L.append(valu('v_lshlrev_b32', a, 10, a))
        L.append(valu('v_bfe_u32', b, vLANE, 2, 3)); L.append(valu('v_lshl_or_b32', a, b, 7, a))
        L.append(valu('v_bfe_u32', b, vLANE, 3, 2)); L.append(valu('v_lshl_or_b32', a, b, 5, a))
    L.append(valu('v_and_b32', b, 3, vLANE)); L.append(valu('v_lshl_or_b32', dst[0], b, 3, a))
    if add: L.append(valu('v_add_u32', dst[0], add, dst[0]))
    for be in (1, 2, 3): L.append(valu('v_xor_b32', dst[be], 32*be, dst[0]))
    return L

def srd_set(srd, ptr, size):
    return [salu('s_mov_b32', srd[0], ptr[0]), salu('s_mov_b32', srd[1], ptr[1]), salu('s_mov_b32', srd[2], size), salu('s_mov_b32', srd[3], 0x20000)]

def common_prologue():
    L = []
    L += [raw('s_cmp_lt_u32 s2, 256', 'salu'), raw('s_cbranch_scc1 L_go', 'branch'), raw('s_endpgm', 'branch'), label('L_go')]
    L += [raw('s_load_dwordx4 s[56:59], s[0:1], 0'), raw('s_load_dwordx4 s[60:63], s[0:1], 16'), raw('s_load_dwordx2 s[64:65], s[0:1], 32'),
          raw('s_load_dwordx4 s[68:71], s[0:1], 48'), raw('s_load_dwordx2 s[72:73], s[0:1], 64'), raw('s_load_dwordx2 s[74:75], s[0:1], 88')]
    L += [valu('v_and_b32', vLANE, 63, V(0)), valu('v_lshrrev_b32', vT0, 6, V(0)), nop(0),
          Ins('v_readfirstlane_b32 s3, v6', 'valu', rd=vT0.regs(), wr=sW.regs(), meta={'readlane': True})]
    L += [salu('s_and_b32', sJ, sWG, 7), salu('s_lshr_b32', sRB, sWG, 3), salu('s_and_b32', sRB, sRB, 15), salu('s_lshr_b32', sROLE, sWG, 7),
          salu('s_lshl_b32', sTMP, sRB, 7), nop(1), salu('s_lshl_b32', sT2, sW, 5), salu('s_add_u32', sTMP, sTMP, sT2)]
    L += [valu('v_and_b32', vT0, 15, vLANE), valu('v_add_u32', vT0, sTMP, vT0), valu('v_mul_u32_u24', vT0, 1152, vT0),
          valu('v_lshrrev_b32', vT1, 4, vLANE), valu('v_lshl_add_u32', vT0, vT1, 4, vT0)]
    L += [salu('s_movk_i32', sT1, 18432), salu('s_mov_b32', SRD_X[2], 2048*576*2), salu('s_mov_b32', SRD_X[3], 0x20000), salu('s_lshl_b32', sM0W, sW, 12)]
    L += [raw('s_waitcnt lgkmcnt(0)', 'wait')]
    L += [salu('s_mov_b32', SRD_X[0], pX[0]), salu('s_mov_b32', SRD_X[1], pX[1])]
    for ks in range(18):
        for t in range(2):
            L.append(bufload(X(t, ks), vT0, SRD_X, sT1 if t else 0, 64*ks))
    L += srd_set(SRD_WS, pWS, 0x10000000)
    L += [salu('s_mov_b32', sMASKHI, 0xffff0000), salu('s_mov_b32', sM1[0], 0xaaaaaaaa), salu('s_mov_b32', sM1[1], 0xaaaaaaaa),
          salu('s_mov_b32', sM2[0], 0xcccccccc), salu('s_mov_b32', sM2[1], 0xcccccccc)]
    L += [salu('s_lshl_b32', sPART, sRB, 4), salu('s_lshl_b32', sTMP, sROLE, 3), salu('s_add_u32', sPART, sPART, sTMP), salu('s_add_u32', sPART, sPART, sJ),
          salu('s_lshl_b32', sPART, sPART, 2), salu('s_add_u32', sPART, sPART, sW), salu('s_mul_i32', sPART, sPART, 36864)]
    return L

def code_prefetch(start, end_):
    L = [raw('s_getpc_b64 s[54:55]', 'salu', wr=sPC.regs()), label('L_pc_' + start),
         salu('s_lshl_b32', sTMP, sRB, 2), salu('s_add_u32', sTMP, sTMP, sW), salu('s_lshl_b32', sTMP, sTMP, 11),
         valu('v_lshlrev_b32', vT1, 5, vLANE), valu('v_add_u32', vT1, sTMP, vT1),
         raw('v_min_u32 v7, %s-L_pc_%s-4, v7' % (end_, start), 'valu', rd=vT1.regs(), wr=vT1.regs()),
         Ins('global_load_dword v0, v7, s[54:55]', 'vmem', rd=vT1.regs() + sPC.regs(), wr=V(0).regs(), meta={'vm': True, 'tag': 'pf'})]
    return L

def ln_stats(role, scale):
    ones = V(240, 4); SUM = [V(224, 4), V(232, 4)]; GR = [V(228, 4), V(236, 4)]
    L = [valu('v_mov_b32', ones[i], 0x3f803f80) for i in range(4)]
    L.append(nop(1))
    for ks in range(18):
        for t in range(2):
            L.append(mfma(SUM[t], ones, X(t, ks), zero=(ks == 0)))
            L.append(mfma(GR[t], X(t, ks), X(t, ks), zero=(ks == 0)))
    bp = V(244)
    L += [valu('v_and_b32', bp, 15, vLANE), valu('v_lshrrev_b32', V(245), 2, bp), valu('v_lshl_add_u32', bp, V(245), 4, bp), valu('v_lshlrev_b32', bp, 2, bp)]
    for t in range(2):
        g = GR[t]; a, b, d = V(246), V(247), V(248 + t)
        L += [valu('v_cndmask_b32', a, g[0], g[1], sM1), valu('v_cndmask_b32', b, g[2], g[3], sM1), valu('v_cndmask_b32', a, a, b, sM2),
              Ins('ds_bpermute_b32 %s, %s, %s' % (d, bp, a), 'ds', rd=bp.regs() + a.regs(), wr=d.regs())]
    for t in range(2):
        m, e = V(250 + t), V(248 + t)
        L += [valu('v_mul_f32', m, f2u(1.0/576), SUM[t][0]),
              valu('v_mul_f32', e, f2u(1.0/576), e),
              Ins('v_fma_f32 %s, -%s, %s, %s' % (e, m, m, e), 'valu', rd=m.regs() + e.regs(), wr=e.regs()),
              valu('v_max_f32', e, 0, e), valu('v_add_f32', e, f2u(1e-5), e), valu('v_rsq_f32', e, e, trans=True), nop(0),
              valu('v_mul_f32', vNA[t], f2u(scale), e) if scale != 1.0 else valu('v_mov_b32', vNA[t], e),
              Ins('v_mul_f32 %s, -%s, %s' % (vNB[t], m, vNA[t]), 'valu', rd=m.regs() + vNA[t].regs(), wr=vNB[t].regs())]
    return L

def ln_norm(t, ks, tmps, dst=None):
    L = []; x = X(t, ks)
    for i in range(4):
        lo, hi = tmps[(2*i) % len(tmps)], tmps[(2*i+1) % len(tmps)]
        L += [valu('v_lshlrev_b32', lo, 16, x[i]), valu('v_and_b32', hi, sMASKHI, x[i]),
              valu('v_fma_f32', lo, lo, vNA[t], vNB[t]), valu('v_fma_f32', hi, hi, vNA[t], vNB[t])]
        if dst is None: L.append(valu('v_cvt_pk_bf16_f32', x[i], lo, hi))
        else: L += [valu('v_cvt_pk_bf16_f32', lo, lo, hi), accw(dst[i], lo)]
    return L

def items(ins, ready, dead):
    return [Item(x, ready=ready, dead=dead) for x in ins]

def epilogue_items(tile, done_of, tmpsets, vlane16, N_end):
    out = []
    order = sorted(range(36), key=lambda a: (done_of(a), a))
    for n, a in enumerate(order):
        T = tmpsets[n % len(tmpsets)]
        src = []
        ins = []
        for t in range(2):
            r = tile(a, t)
            if r.k == 'a':
                for i in range(4): ins.append(accr(T[4*t+i], r[i]))
                src.append(T.sub(4*t, 4))
            else: src.append(r)
        dst = T.sub(0, 4) if src[0].k == 'v' and src[0].b == T.b else T.sub(0, 4)
        ins += [valu('v_cvt_pk_bf16_f32', dst[0], src[0][0], src[0][1]), valu('v_cvt_pk_bf16_f32', dst[1], src[0][2], src[0][3]),
                valu('v_cvt_pk_bf16_f32', dst[2], src[1][0], src[1][1]), valu('v_cvt_pk_bf16_f32', dst[3], src[1][2], src[1][3])]
        if a % 4 == 0 or n == 0 or (order[n-1] >> 2) != (a >> 2):
            ins.append(salu('s_add_u32', sSTO, sPART, 4096*(a >> 2)) if a >> 2 else salu('s_mov_b32', sSTO, sPART))
        st = bufstore(dst, vlane16, SRD_WS, sSTO, 1024*(a & 3))
        rdy = done_of(a) + 5
        out += items(ins, rdy, N_end) + [Item(st, ready=rdy, dead=N_end)]
    return out

def verify_ring(L, R):
    npos = NPOS//4
    bar = 0; waited = {}
    vm = []; pub = {}; last_use_bar = {}; dma_bar = {}; first_read_bar = {}
    region = dict(R.init_region)
    pend_landed = set()
    for I in L:
        m = I.meta
        if m.get('vm'): vm.append(m.get('dma', m.get('tag')))
        if I.kind == 'wait' and 'cnt' in m and m['cnt'][0] is not None:
            n = m['cnt'][0]
            done = vm[:max(0, len(vm) - n)]; vm = vm[max(0, len(vm) - n):]
            for tg in done:
                if isinstance(tg, tuple) and tg not in vm: pend_landed.add(tg[1])
        if I.kind == 'barrier':
            bar += 1
            for q in pend_landed: pub.setdefault(q, bar)
            pend_landed = set()
        if m.get('dma') is not None:
            q = m['dma'][1]; dma_bar.setdefault(q, bar)
            prev = q - npos
            if prev >= 0:
                assert prev in last_use_bar and last_use_bar[prev] < bar, ('DMA overwrites live data', q, prev, last_use_bar.get(prev), bar)
                assert R.periods[prev].done_use, ('DMA before last use', q)
        if 'rdper' in m:
            q = m['rdper']; assert q in pub and pub[q] <= bar, ('read before publication', q)
            key = m['akey']; assert region[key] == m['ldsaddr'] >> 16, ('address region', key, I.text)
        if I.text.startswith('v_xor_b32') and '0x10000' in I.text:
            rb = list(I.wr)[0][1]
            ks = [k for k in region if k[0] == rb]
            k = max(ks, key=lambda z: z[1]) if getattr(R, 'epoch_now', {}).get(rb) else min(ks, key=lambda z: z[1])
            region[k] ^= 1
        if I.kind == 'valu' and not ('0x10000' in I.text and I.text.startswith('v_xor')):
            for r in I.wr:
                if r[0] == 'v' and (r[1], 1) in region and (r[1], 0) in region and bar > 4:
                    R.epoch_now = getattr(R, 'epoch_now', {}); R.epoch_now[r[1]] = True
        if 'useper' in m:
            q = m['useper']; last_use_bar[q] = bar
            per = R.periods[q]; per.nuse = getattr(per, 'nuse', 0) + 1
            per.done_use = per.nuse >= per.total_use
    return True
```

```python
from k1 import *

CFG = dict(dump=None)

def dump_regs(rs, slot0, vlane16, tmp=None):
    L = [salu('s_lshl_b32', sTMP, sWG, 2), salu('s_add_u32', sTMP, sTMP, sW), salu('s_lshl_b32', sTMP, sTMP, 18), salu('s_add_u32', sTMP, sTMP, 0x4000000)]
    L += [valu('v_lshlrev_b32', vlane16, 4, vLANE), nop(7), nop(7)]
    for i, r in enumerate(rs):
        s = slot0 + i
        L.append(salu('s_add_u32', sT2, sTMP, 1024*s))
        L.append(bufstore(r, vlane16, SRD_WS, sT2, 0))
    L.append(waitcnt(vm=0))
    return L

def q_tile(a, t):
    if a < 12: return V(160 + 8*a + 4*t, 4)
    if a < 16: return A(128 + 8*(a-12) + 4*t, 4)
    return A(8*(a-16) + 4*t, 4)
def q_frag(p, h, t, ks):
    return A(160 + 32*h + 16*t + 4*ks, 4) if p == 0 else A(64*h + 16*ks + 4*t, 4)
def S_t(h, t, kt): return V(160 + 16*h + 8*t + 4*kt, 4)
def P_t(buf, h, t): return V(192 + 16*buf + 8*h + 4*t, 4)
def O_t(h, t, dt): return V(32 + 64*h + 32*t + 4*dt, 4)
def L_t(h, t): return A(128 + 8*h + 4*t, 4)
ONES_A = A(144, 4)
KA = [V(16+i) for i in range(4)]; VA = [V(20+i) for i in range(8)]; KVOFF = [V(28+i) for i in range(4)]
def o_frag(p, h, t, u):
    return A(160 + 32*h + 16*t + 4*u, 4) if p == 0 else V(160 + 32*h + 16*t + 4*u, 4)
def out_tile_att(a, t):
    return A(8*a + 4*t, 4) if a < 20 else V(32 + 8*(a-20) + 4*t, 4)

def q_convert(p, h, t, ks, tmp8):
    a0 = 16*p + 8*h + 2*ks
    x, y = q_tile(a0, t), q_tile(a0+1, t); L = []
    if x.k == 'a':
        for i in range(4): L.append(accr(tmp8[i], x[i]))
        x = tmp8.sub(0, 4)
    if y.k == 'a':
        for i in range(4): L.append(accr(tmp8[4+i], y[i]))
        y = tmp8.sub(4, 4)
    L += [valu('v_cvt_pk_bf16_f32', x[0], x[0], x[1]), valu('v_cvt_pk_bf16_f32', x[1], x[2], x[3]),
          valu('v_cvt_pk_bf16_f32', x[2], y[0], y[1]), valu('v_cvt_pk_bf16_f32', x[3], y[2], y[3])]
    L += [swap('v_permlane32_swap_b32', x[0], x[2]), swap('v_permlane32_swap_b32', x[1], x[3]),
          swap('v_permlane16_swap_b32', x[0], x[2]), swap('v_permlane16_swap_b32', x[1], x[3])]
    d = q_frag(p, h, t, ks)
    L += [accw(d[i], x[i]) for i in range(4)]
    return L

def build_attention():
    R = Role(stage_base=224); sc = R.sc; st = R.stats
    pre = []
    pre += srd_set(SRD_W1, pWQ, 576*4096*2) + srd_set(SRD_W2, pWO, 4096*576*2) + srd_set(SRD_K, pK, 16*2048*128*2) + srd_set(SRD_V, pV, 16*2048*128*2)
    pre += [scmp('s_cmp_lt_u32', sW, 2), salu('s_cselect_b32', SRD_KV[0], pK[0], pV[0]), salu('s_cselect_b32', SRD_KV[1], pK[1], pV[1]),
            salu('s_mov_b32', SRD_KV[2], 16*2048*128*2), salu('s_mov_b32', SRD_KV[3], 0x20000),
            salu('s_cselect_b32', sX1, 64, 128), salu('s_cselect_b32', sX2, 128, 0), salu('s_xor_b32', sX3, sX1, sX2)]
    pre += [salu('s_lshl_b32', sTMP, sJ, 10),
            salu('s_lshl_b32', sWA1, sW, 18), salu('s_add_u32', sWA1, sWA1, sTMP),
            salu('s_and_b32', sT2, sW, 1), salu('s_lshl_b32', sWB1, sT2, 18), salu('s_lshr_b32', sT3, sW, 1), salu('s_lshl_b32', sT3, sT3, 7),
            salu('s_add_u32', sWB1, sWB1, sT3), salu('s_add_u32', sWB1, sWB1, sTMP),
            salu('s_lshl_b32', sWKV, sJ, 20), salu('s_lshl_b32', sT2, sT2, 12), salu('s_add_u32', sWKV, sWKV, sT2), salu('s_add_u32', sWKV, sWKV, 1536*256),
            salu('s_lshl_b32', sKVB, sJ, 20), salu('s_add_u32', sKVB, sKVB, 1536*256),
            salu('s_mul_i32', sWA2, sW, 36864), salu('s_mul_i32', sTMP, sJ, 512*1152), salu('s_add_u32', sWA2, sWA2, sTMP)]
    pre += lane_pattern_voffs(VOFF, 8192, True, V(244), V(245)) + lane_pattern_tr(RA, True, V(244), V(245))
    touched = set(); xn_first = {}; tile_last = {}
    def q_group(per, w, ks, c):
        for be in range(4):
            f = R.new_frag(per, w, 'tr', RA[be], 0, 512)
            a = 4*c + be
            for t in range(2):
                m = R.mf(q_tile(a, t), f, X(t, ks), zero=(a, t) not in touched); touched.add((a, t))
                xn_first.setdefault((t, ks), m); tile_last[(a, t)] = m
    for s in range(4):
        per = R.new_period(SRD_W1, sWB1, 256*s, VOFF)
        for w in range(4): q_group(per, w, w & 1, 2*s + (w >> 1))
    for k in range(4):
        ks0 = 2 + 4*k
        for c in range(8):
            per = R.new_period(SRD_W1, sWA1, ks0*262144 + 128*c, VOFF)
            for w in range(4): q_group(per, w, ks0 + w, c)
    nQ = len(sc.bb)
    qk_first = {}; S_done = {}; S_over = {}; pv_idx = {}; sum_idx = {}; P_first = {}
    kvper = {}
    def QK(g):
        p = g // 16
        per = R.new_period(SRD_KV, sWKV, p*524288 + (g % 16)*8192, KVOFF); kvper[g] = per
        for kt in range(2):
            for ks in range(4):
                f = R.new_frag(per, kt, 'k', KA[ks], 0)
                for h in range(2):
                    for t in range(2):
                        m = R.mf(S_t(h, t, kt), f, q_frag(p, h, t, ks), zero=(ks == 0))
                        qk_first.setdefault((p, h, t, ks), m)
                        if ks == 0: S_over[(g, h, t, kt)] = m
                        if ks == 3: S_done[(g, h, t, kt)] = m
    def PV(g):
        per = kvper[g]; z = (g % 16 == 0)
        for h in range(2):
            for t in range(2):
                m = R.mf(L_t(h, t), ONES_A, P_t(g & 1, h, t), zero=z); sum_idx[(g, h, t)] = m
                P_first.setdefault((g, h, t), m)
        for dt in range(8):
            f = R.new_frag(per, 2, 'tr', VA[dt], 0, 4096, span=2)
            for h in range(2):
                for t in range(2):
                    pv_idx[(g, h, t, dt)] = R.mf(O_t(h, t, dt), f, P_t(g & 1, h, t), zero=z)
    step_start = {}
    for g in range(33):
        step_start[g] = len(sc.bb)
        if g < 32: QK(g)
        if g >= 1: PV(g-1)
    nA = len(sc.bb)
    OV = [V(12+i) for i in range(4)]
    touched = set(); out_first = {}; out_last = {}; o_first = {}
    for k in range(4):
        for c in range(9):
            per = R.new_period(SRD_W2, sWA2, 4*k*36864 + 128*c, OV)
            for w in range(4):
                ks = 4*k + w; hh, u = ks >> 2, ks & 3
                for be in range(4):
                    f = R.new_frag(per, w, 'tr', RA[be], 0, 2048, epoch=1)
                    a = 4*c + be
                    for t in range(2):
                        m = R.mf(out_tile_att(a, t), f, o_frag(hh >> 1, hh & 1, t, u), zero=(a, t) not in touched); touched.add((a, t))
                        out_first.setdefault((a, t), m); out_last[(a, t)] = m; o_first.setdefault((hh, t, u), m)
    N = len(sc.bb)
    order = sorted(xn_first, key=lambda k: xn_first[k])
    ln_pre = []; ln = []
    tm = [vT0, vT1]
    for (t, ks) in order:
        if ks < 2: ln_pre += ln_norm(t, ks, tm)
        else: ln += items(ln_norm(t, ks, tm), -1, xn_first[(t, ks)] - 2)
    sc.stream(ln, name='ln')
    x01_dead = max(m for m in range(nQ) if any(r in sc.bb[m].rd for t in range(2) for ks in range(2) for r in X(t, ks).regs()))
    t0, t1 = V(16), V(17)
    kv = []
    a, b, c_ = V(20), V(21), V(22)
    kv += [valu('v_lshrrev_b32', a, 4, vLANE), valu('v_and_b32', b, 15, vLANE),
           valu('v_xor_b32', c_, a, b), valu('v_lshlrev_b32', c_, 4, c_), valu('v_lshl_or_b32', KVOFF[0], a, 8, c_),
           valu('v_lshrrev_b32', c_, 1, b), valu('v_xor_b32', c_, c_, a), valu('v_lshlrev_b32', c_, 5, c_), valu('v_and_b32', b, 1, b),
           valu('v_lshl_or_b32', c_, b, 4, c_), valu('v_lshl_or_b32', KVOFF[1], a, 8, c_),
           valu('v_cmp_gt_u32', 'vcc', 2, sW) if False else Ins('v_cmp_gt_u32_e64 vcc, 2, %s' % sW, 'valu', rd=sW.regs(), wr=[('s', 'vcc')]),
           nop(1), Ins('v_cndmask_b32 %s, %s, %s, vcc' % (KVOFF[0], KVOFF[1], KVOFF[0]), 'valu', rd=KVOFF[0].regs() + KVOFF[1].regs() + [('s', 'vcc')], wr=KVOFF[0].regs()),
           valu('v_xor_b32', KVOFF[1], sX1, KVOFF[0]), valu('v_xor_b32', KVOFF[2], sX2, KVOFF[0]), valu('v_xor_b32', KVOFF[3], sX3, KVOFF[0])]
    n_kv_dma = len(kv)
    kv += [valu('v_and_b32', b, 15, vLANE), valu('v_lshrrev_b32', a, 4, vLANE), valu('v_xor_b32', c_, a, b), valu('v_lshlrev_b32', c_, 4, c_),
           valu('v_lshl_or_b32', KA[0], b, 8, c_)]
    kv += [valu('v_xor_b32', KA[k], 64*k, KA[0]) for k in (1, 2, 3)]
    kv += [valu('v_lshrrev_b32', a, 2, vLANE), valu('v_and_b32', b, 7, a), valu('v_lshlrev_b32', b, 5, b), valu('v_lshl_or_b32', b, a, 8, b),
           valu('v_and_b32', a, 3, vLANE), valu('v_lshl_or_b32', VA[0], a, 3, b)]
    kv += [valu('v_xor_b32', VA[k], 32*k, VA[0]) for k in range(7, 0, -1)]
    def first_dma_ready(i): return None if i < 3 else 8*(i-3)
    def batch_of(f): return 4 if (f['kind'] == 'tr' and f['span'] == 1) else 2
    dma_pre = R.finish_memory(first_dma_ready, batch_of)
    assert R.init_region[(RA[0].b, 0)] == 0
    kreg, vreg = R.init_region[(KA[0].b, 0)], R.init_region[(VA[0].b, 0)]
    for k in range(4): assert R.init_region[(KA[k].b, 0)] == kreg and R.init_region[(RA[k].b, 1)] == R.init_region[(RA[0].b, 1)]
    for k in range(8): assert R.init_region[(VA[k].b, 0)] == vreg
    kv_dma = kv[:n_kv_dma]; kv_rd = kv[n_kv_dma:]
    if kreg: kv_rd = kv_rd[:5] + [valu('v_add_u32', KA[0], 65536*kreg, KA[0])] + kv_rd[5:]
    i0 = [i for i, x in enumerate(kv_rd) if x.wr == frozenset(VA[0].regs()) and 'v_lshl_or' in x.text][-1]
    if vreg: kv_rd = kv_rd[:i0+1] + [valu('v_add_u32', VA[0], 65536*vreg, VA[0])] + kv_rd[i0+1:]
    sc.stream(items(kv_dma, x01_dead + 1, kvper[0].dma_ready - 1) + items(kv_rd, x01_dead + 1, kvper[0].first_read - 2), name='kvaddr')
    firstOper = [p for p in R.periods if p.srd is SRD_W2][0]
    lastQread = max(R.last_use_gap[(RA[k].b, 0)] for k in range(4))
    osw = lane_pattern_voffs(OV, 1152, False, vT0, vT1)
    ora = lane_pattern_tr(RA, False, vT0, vT1, add=65536*R.init_region[(RA[0].b, 1)])
    sc.stream(items(osw, nQ, firstOper.dma_ready - 1) + items(ora, max(nQ, lastQread), firstOper.first_read - 2), name='oaddr')
    tmpA, tmpB = V(144, 8), V(152, 8)
    tmpA, tmpB = V(32, 8), V(40, 8)
    cv0 = []
    keys = sorted([(h, t, ks) for h in range(2) for t in range(2) for ks in range(4)], key=lambda k: max(tile_last[(8*k[0] + 2*k[2], k[1])], tile_last[(8*k[0] + 2*k[2] + 1, k[1])]))
    for n, (h, t, ks) in enumerate(keys):
        rdy = max(tile_last[(8*h + 2*ks, t)], tile_last[(8*h + 2*ks + 1, t)]) + 5
        cv0 += items(q_convert(0, h, t, ks, tmpA if n & 1 else tmpB), rdy, min(qk_first[(0, h, t, ks)], qk_first[(0, 0, 0, 0)]) - 3)
    cv0 += items([valu('v_mov_b32', tmpA[0], 0x3f803f80)] + [accw(ONES_A[i], tmpA[0]) for i in range(4)], nQ - 40, step_start[1] - 3)
    sc.stream(cv0, name='qcv0')
    cv1 = []
    tq = V(224, 8)
    for n, (h, t, ks) in enumerate(keys):
        rdy = max(tile_last[(16 + 8*h + 2*ks, t)], tile_last[(16 + 8*h + 2*ks + 1, t)], step_start[1]) + 5
        cv1 += items(q_convert(1, h, t, ks, tq), rdy + 40*n, qk_first[(1, h, t, ks)] - 3)
    sc.stream(cv1, name='qcv1')
    sm = []
    for g in range(32):
        for kt in range(2):
            for h in range(2):
                for t in range(2):
                    s_ = S_t(h, t, kt); p_ = P_t(g & 1, h, t)
                    rdy = S_done[(g, h, t, kt)] + 5
                    dead = P_first[(g, h, t)] - 2
                    if (g+1, h, t, kt) in S_over: dead = min(dead, S_over[(g+1, h, t, kt)] - 1)
                    ins = [valu('v_exp_f32', s_[i], s_[i], trans=True) for i in range(4)]
                    ins += [valu('v_cvt_pk_bf16_f32', p_[2*kt], s_[0], s_[1]), valu('v_cvt_pk_bf16_f32', p_[2*kt+1], s_[2], s_[3])]
                    sm += items(ins, rdy, dead)
    sc.stream(sm, rate=2.0, name='softmax')
    for p in range(2):
        g = 16*p + 15
        lastpv = max(pv_idx[(g, h, t, 7)] for h in range(2) for t in range(2))
        lt = [V(232+i) for i in range(4)]; ri = [V(236+i) for i in range(4)]
        chk = []
        for n, (h, t) in enumerate([(h, t) for h in range(2) for t in range(2)]):
            chk += [accr(lt[n], L_t(h, t)[0])]
        for n in range(4):
            chk += [valu('v_lshrrev_b32', ri[n], 23, lt[n]), valu('v_subrev_u32', ri[n], 67, ri[n])]
        chk += [valu('v_max_u32', ri[0], ri[0], ri[1]), valu('v_max_u32', ri[2], ri[2], ri[3]), valu('v_max_u32', ri[0], ri[0], ri[2]),
                Ins('v_cmp_lt_u32 vcc, 120, %s' % ri[0], 'valu', rd=ri[0].regs(), wr=[('s', 'vcc')])]
        lsum = max(sum_idx[(g, h, t)] for h in range(2) for t in range(2))
        sc.stream(items(chk, lsum + 6, lastpv - 1), name='chk%d' % p)
        sc.post(lastpv, nop(7)); sc.post(lastpv, nop(0))
        sc.post(lastpv, raw('s_cbranch_vccnz L_slow%d' % p, 'branch')); sc.post(lastpv, label('L_back%d' % p))
        fin = []
        for n, (h, t) in enumerate([(h, t) for h in range(2) for t in range(2)]):
            fin += [(accr(lt[n], L_t(h, t)[0]), None)]
        for n in range(4): fin += [(valu('v_rcp_f32', ri[n], lt[n], trans=True), None)]
        fl = [Item(x, ready=lastpv, dead=(sum_idx[(16, 0, 0)] - 1 if p == 0 else out_first[(16, 0)] - 1)) for x, _ in fin]
        for u in range(4):
            for n, (h, t) in enumerate([(h, t) for h in range(2) for t in range(2)]):
                x, y = O_t(h, t, 2*u), O_t(h, t, 2*u+1)
                ins = [valu('v_mul_f32', r, r, ri[n]) for r in (x[0], x[1], x[2], x[3], y[0], y[1], y[2], y[3])]
                d = o_frag(p, h, t, u)
                if p == 0:
                    ins += [valu('v_cvt_pk_bf16_f32', x[0], x[0], x[1]), valu('v_cvt_pk_bf16_f32', x[1], x[2], x[3]),
                            valu('v_cvt_pk_bf16_f32', x[2], y[0], y[1]), valu('v_cvt_pk_bf16_f32', x[3], y[2], y[3])]
                    ins += [accw(d[i], x[i]) for i in range(4)]
                    dead = min(pv_idx[(16, h, t, 2*u)], pv_idx[(16, h, t, 2*u+1)]) - 1
                else:
                    ins += [valu('v_cvt_pk_bf16_f32', d[0], x[0], x[1]), valu('v_cvt_pk_bf16_f32', d[1], x[2], x[3]),
                            valu('v_cvt_pk_bf16_f32', d[2], y[0], y[1]), valu('v_cvt_pk_bf16_f32', d[3], y[2], y[3])]
                    def alias_dead(r):
                        a_ = 20 + (r.b - 32)//8; t_ = ((r.b - 32)//4) & 1
                        return out_first[(a_, t_)]
                    dead = min(alias_dead(x), alias_dead(y), o_first[(2 + h, t, u)] - 2) - 1
                fl += items(ins, lastpv, dead)
        sc.stream(fl, rate=2.0, name='fin%d' % p)
    vl16 = V(28)
    ep = [Item(valu('v_lshlrev_b32', vl16, 4, vLANE), ready=nA + 8, dead=N)]
    ep += epilogue_items(out_tile_att, lambda a: max(out_last[(a, 0)], out_last[(a, 1)]), [V(224, 8), V(232, 8), V(240, 8), V(248, 8)], vl16, N)
    sc.stream(ep, rate=2.0, name='epi')
    body = sc.run(st)
    L = [label('L_att')] + pre + dma_pre + code_prefetch('L_att', 'L_att_end') + ln_stats('att', LOG2E/math.sqrt(128.0)) + ln_pre
    L += [wait_vm(('P', 0)), barrier()] if R.periods[0].bar_gap < -1 else []
    L += body
    L += [raw('s_endpgm', 'branch')]
    return L, R


def XN(t, ks): return X(t, ks) if ks < 10 else A(144 + 8*(ks-10) + 4*t, 4)
def G_t(buf, be, t): return V((160 if buf == 0 else 96) + 8*be + 4*t, 4)
def U_t(buf, be, t): return V((160 if buf == 0 else 96) + 32 + 8*be + 4*t, 4)
def H_f(ks, t): return A(8*ks + 4*t, 4)
def out_tile_ffn(a, t):
    if a >= 28: return V(160 + 8*(a-28) + 4*t, 4)
    i = 2*a + t
    if i < 36: return V(16 + 4*i, 4)
    i -= 36
    return A(144 + 4*i, 4) if i < 16 else A(240 + 4*(i-16), 4)
vGA = V(234)
RA2 = [V(236+i) for i in range(4)]; DV = [V(240+i) for i in range(4)]
GA_C = -2.0*LOG2E*math.sqrt(2.0/math.pi); GB_C = GA_C*0.044715

def gelu_tile(u, be, t, T):
    g, up = G_t(u & 1, be, t), U_t(u & 1, be, t)
    L = []
    L += [valu('v_mul_f32', T[i], g[i], g[i]) for i in range(4)]
    L += [valu('v_fma_f32', T[i], T[i], sGB, vGA) for i in range(4)]
    L += [valu('v_mul_f32', T[i], T[i], g[i]) for i in range(4)]
    L += [valu('v_exp_f32', T[i], T[i], trans=True) for i in range(4)]
    L += [valu('v_mul_f32', g[i], g[i], up[i]) for i in range(2)]
    L += [valu('v_add_f32', T[i], 1.0, T[i]) for i in range(4)]
    L += [valu('v_rcp_f32', T[i], T[i], trans=True) for i in range(4)]
    L += [valu('v_mul_f32', g[i], g[i], up[i]) for i in range(2, 4)]
    L += [valu('v_mul_f32', g[i], g[i], T[i]) for i in range(4)]
    h = H_f(2*u + (be >> 1), t).sub(2*(be & 1), 2)
    L += [valu('v_cvt_pk_bf16_f32', T[0], g[0], g[1]), valu('v_cvt_pk_bf16_f32', T[1], g[2], g[3]), accw(h[0], T[0]), accw(h[1], T[1])]
    return L

def build_ffn():
    R = Role(stage_base=208); sc = R.sc; st = R.stats
    pre = []
    pre += [salu('s_and_b32', sT2, sW, 1), scmp('s_cmp_eq_u32', sT2, 0), salu('s_cselect_b32', SRD_W1[0], pWG[0], pWU[0]), salu('s_cselect_b32', SRD_W1[1], pWG[1], pWU[1]),
            salu('s_mov_b32', SRD_W1[2], 576*4608*2), salu('s_mov_b32', SRD_W1[3], 0x20000)]
    pre += srd_set(SRD_W2, pWD, 4608*576*2)
    pre += [salu('s_lshr_b32', sT3, sW, 1), salu('s_mul_i32', sWA1, sT3, 32*9216), salu('s_mul_i32', sTMP, sJ, 1152), salu('s_add_u32', sWA1, sWA1, sTMP),
            salu('s_mul_i32', sTMP, sJ, 576*1152), salu('s_mul_i32', sWA2, sW, 36864), salu('s_add_u32', sWA2, sWA2, sTMP),
            salu('s_mul_i32', sWB2X, sT2, 36864), salu('s_add_u32', sWB2X, sWB2X, sTMP), salu('s_lshl_b32', sT3, sT3, 7), salu('s_add_u32', sWB2, sWB2X, sT3),
            salu('s_mov_b32', sGB, f2u(GB_C))]
    pre += lane_pattern_voffs(VOFF, 9216, True, V(244), V(245)) + lane_pattern_tr(RA, True, V(244), V(245))
    touched = set(); xn_first = {}; acc_first = {}; acc_last = {}; unit_start = {}
    for u in range(9):
        unit_start[u] = len(sc.bb)
        for s in range(9):
            per = R.new_period(SRD_W1, sWA1, s*2*32*9216 + 128*u, VOFF)
            for w in range(4):
                ks, mat = 2*s + (w >> 1), w & 1
                for be in range(4):
                    f = R.new_frag(per, w, 'tr', RA[be], 0, 512)
                    for t in range(2):
                        d = (U_t if mat else G_t)(u & 1, be, t)
                        m = R.mf(d, f, XN(t, ks), zero=(ks == 0))
                        xn_first.setdefault((t, ks), m); acc_first.setdefault((u, mat, be, t), m); acc_last[(u, mat, be, t)] = m
    nG = len(sc.bb); unit_start[9] = nG
    touched = set(); out_first = {}; out_last = {}; h_first = {}
    def d_group(per, w, ks, c):
        for be in range(4):
            f = R.new_frag(per, w, 'tr', RA2[be], 0, 2048, epoch=1)
            a = 4*c + be
            for t in range(2):
                m = R.mf(out_tile_ffn(a, t), f, H_f(ks, t), zero=(a, t) not in touched); touched.add((a, t))
                out_first.setdefault((a, t), m); out_last[(a, t)] = m; h_first.setdefault((t, ks), m)
    def superA(ks0):
        for c in range(9):
            per = R.new_period(SRD_W2, sWA2, ks0*36864 + 128*c, DV)
            for w in range(4): d_group(per, w, ks0 + w, c)
    superA(0); superA(4); superA(8)
    for s in range(4):
        per = R.new_period(SRD_W2, sWB2, 16*36864 + 256*s, DV)
        for w in range(4): d_group(per, w, 16 + (w & 1), 2*s + (w >> 1))
    per = R.new_period(SRD_W2, sWB2X, 16*36864 + 128*8, DV)
    for w in range(2): d_group(per, w, 16 + w, 8)
    superA(12)
    N = len(sc.bb)
    def first_dma_ready(i): return None if i < 3 else 8*(i-3)
    dma_pre = R.finish_memory(first_dma_ready, lambda f: 4)
    assert R.init_region[(RA[0].b, 0)] == 0
    ln_pre = []; ln = []
    tm = [vT0, vT1, V(246), V(247)]
    for (t, ks) in sorted(xn_first, key=lambda k: xn_first[k]):
        ins = ln_norm(t, ks, tm, dst=None if ks < 10 else XN(t, ks))
        if ks < 2: ln_pre += ins
        else: ln += items(ins, -1, xn_first[(t, ks)] - 3)
    sc.stream(ln, rate=2.0, name='ln')
    firstD = [p for p in R.periods if p.srd is SRD_W2][0]
    sw = lane_pattern_voffs(DV, 1152, False, V(244), V(245)) + lane_pattern_tr(RA2, False, V(244), V(245), add=65536*R.init_region[(RA2[0].b, 1)])
    sc.stream(items(sw, unit_start[3], min(firstD.dma_ready, unit_start[7]) - 1), name='daddr')
    ge = []
    Ts = [V(224, 4), V(228, 4)]
    n = 0
    for u in range(9):
        span = (unit_start[u+1] - unit_start[u]) if u < 8 else 288
        for k, (be, t) in enumerate([(be, t) for be in range(4) for t in range(2)]):
            rdy = max(acc_last[(u, 0, be, t)], acc_last[(u, 1, be, t)]) + 5
            soft = unit_start[u+1] + (k+1)*36 - 1 if u < 8 else unit_start[9] + (k+1)*28
            hard = []
            if u + 2 <= 8: hard += [acc_first[(u+2, 0, be, t)] - 1, acc_first[(u+2, 1, be, t)] - 1]
            if u == 8:
                for r in (G_t(0, be, t), U_t(0, be, t)):
                    a_ = 28 + (r.b - 160)//8; t_ = ((r.b - 160)//4) & 1
                    hard.append(out_first[(a_, t_)] - 1)
            if u == 7:
                for r in (G_t(1, be, t), U_t(1, be, t)):
                    i_ = (r.b - 16)//4
                    hard.append(out_first[(i_//2, i_ & 1)] - 1)
            hard.append(h_first[(t, 2*u + (be >> 1))] - 3)
            ge += items(gelu_tile(u, be, t, Ts[n & 1]), rdy, min([soft] + hard)); n += 1
    sc.stream(ge, rate=1.6, name='gelu')
    vl16 = V(252)
    ep = [Item(valu('v_lshlrev_b32', vl16, 4, vLANE), ready=nG + 300, dead=N)]
    ep += epilogue_items(out_tile_ffn, lambda a: max(out_last[(a, 0)], out_last[(a, 1)]), [V(224, 8), V(244, 8)], vl16, N)
    sc.stream(ep, rate=2.0, name='epi')
    body = sc.run(st)
    L = [label('L_ffn')] + pre + dma_pre + code_prefetch('L_ffn', 'L_ffn_end') + ln_stats('ffn', 1.0) + [valu('v_mov_b32', vGA, f2u(GA_C))] + ln_pre
    L += [wait_vm(('P', 0)), barrier()] if R.periods[0].bar_gap < -1 else []
    L += body
    L += [raw('s_endpgm', 'branch')]
    return L, R
```

```python
from roles import *

def slow_path(p):
    L = [label('L_slow%d' % p), waitcnt(vm=0, lgkm=0)]
    Kf = [V(224 + 4*k, 4) for k in range(4)]; St = [V(240, 4), V(244, 4)]; Pf = V(248, 4)
    m, vK, vV, tmp = V(252), V(253), V(254), V(255)
    sB, sB2 = sT2, sT3
    big = [nop(15)]
    L += [valu('v_and_b32', tmp, 15, vLANE), valu('v_lshrrev_b32', vV, 4, vLANE),
          valu('v_lshlrev_b32', vK, 4, vV), valu('v_lshl_or_b32', vK, tmp, 8, vK),
          valu('v_lshlrev_b32', vV, 10, vV), valu('v_lshl_or_b32', vV, tmp, 1, vV)]
    n = 0
    for h in range(2):
        for t in range(2):
            tag = '%d_%d' % (p, n); n += 1
            q = [q_frag(p, h, t, ks) for ks in range(4)]
            def ktile(dst, soff):
                I = [bufload(Kf[ks], vK, SRD_K, soff, 64*ks) for ks in range(4)] + [waitcnt(vm=0)]
                I += [mfma(dst, Kf[ks], q[ks], zero=(ks == 0)) for ks in range(4)]
                return I + big
            L += [valu('v_mov_b32', m, 0xff800000), salu('s_add_u32', sB, sKVB, p*524288) if p else salu('s_mov_b32', sB, sKVB), salu('s_mov_b32', sLOOP, 32),
                  label('L_sm_' + tag)]
            L += ktile(St[0], sB)
            L += [valu('v_max3_f32', m, m, St[0][0], St[0][1]), valu('v_max3_f32', m, m, St[0][2], St[0][3]),
                  salu('s_add_u32', sB, sB, 4096), salu('s_sub_u32', sLOOP, sLOOP, 1), scmp('s_cmp_lg_u32', sLOOP, 0), raw('s_cbranch_scc1 L_sm_' + tag, 'branch')]
            L += [valu('v_mov_b32', tmp, m), nop(1), swap('v_permlane32_swap_b32', m, tmp), nop(1), valu('v_max_f32', m, m, tmp),
                  valu('v_mov_b32', tmp, m), nop(1), swap('v_permlane16_swap_b32', m, tmp), nop(1), valu('v_max_f32', m, m, tmp)]
            for dt in range(8):
                for i in range(4): L.append(valu('v_mov_b32', O_t(h, t, dt)[i], 0))
            for i in range(4): L.append(accw(L_t(h, t)[i], 0))
            L += [salu('s_add_u32', sB, sKVB, p*524288) if p else salu('s_mov_b32', sB, sKVB), salu('s_mov_b32', sLOOP, 16), label('L_sp_' + tag)]
            L += [salu('s_add_u32', sB2, sB, 4096)]
            L += ktile(St[0], sB) + ktile(St[1], sB2)
            for k in range(2):
                for i in range(4):
                    L += [valu('v_sub_f32', St[k][i], St[k][i], m), valu('v_exp_f32', St[k][i], St[k][i], trans=True)]
            L += [nop(1), valu('v_cvt_pk_bf16_f32', Pf[0], St[0][0], St[0][1]), valu('v_cvt_pk_bf16_f32', Pf[1], St[0][2], St[0][3]),
                  valu('v_cvt_pk_bf16_f32', Pf[2], St[1][0], St[1][1]), valu('v_cvt_pk_bf16_f32', Pf[3], St[1][2], St[1][3]), nop(1),
                  mfma(L_t(h, t), ONES_A, Pf)]
            for dt in range(8):
                g = [V(224 + i) for i in range(8)]; Vf = V(232, 4)
                for i in range(8):
                    L.append(bufload(g[i], vV, SRD_V, sB if i < 4 else sB2, 256*(i & 3) + 32*dt, op='buffer_load_ushort'))
                L.append(waitcnt(vm=0))
                L += [valu('v_lshl_or_b32', Vf[i], g[2*i+1], 16, g[2*i]) for i in range(4)]
                L += [nop(1), mfma(O_t(h, t, dt), Vf, Pf), nop(7)]
            L += big + [salu('s_add_u32', sB, sB, 8192), salu('s_sub_u32', sLOOP, sLOOP, 1), scmp('s_cmp_lg_u32', sLOOP, 0), raw('s_cbranch_scc1 L_sp_' + tag, 'branch')]
    L += big + [raw('s_branch L_back%d' % p, 'branch')]
    return L

def build_k2(name):
    L = [raw('s_cmp_ge_u32 s2, 288', 'salu'), raw('s_cbranch_scc1 L_end2', 'branch'),
         raw('s_load_dwordx2 s[4:5], s[0:1], 0'), raw('s_load_dwordx2 s[6:7], s[0:1], 72'), raw('s_load_dwordx2 s[8:9], s[0:1], 88')]
    lane, t0, t1 = V(1), V(2), V(3)
    L += [valu('v_and_b32', lane, 63, V(0)), valu('v_lshrrev_b32', t0, 6, V(0)), nop(0),
          Ins('v_readfirstlane_b32 s3, v2', 'valu', rd=t0.regs(), wr=S(3).regs(), meta={'readlane': True}), nop(3)]
    L += [salu('s_lshl_b32', S(10), S(2), 2), salu('s_add_u32', S(10), S(10), S(3)),
          salu('s_mul_i32', S(11), S(10), 3641), salu('s_lshr_b32', S(11), S(11), 16),
          salu('s_mul_i32', S(12), S(11), 18), salu('s_sub_u32', S(12), S(10), S(12)),
          salu('s_lshr_b32', S(13), S(11), 2), salu('s_and_b32', S(14), S(11), 3),
          salu('s_mul_i32', S(15), S(13), 16*147456), salu('s_mul_i32', S(16), S(14), 36864), salu('s_add_u32', S(15), S(15), S(16)),
          salu('s_lshl_b32', S(16), S(12), 11), salu('s_add_u32', S(15), S(15), S(16))]
    L += [salu('s_lshl_b32', S(17), S(11), 5), valu('v_and_b32', t0, 15, lane), valu('v_add_u32', t0, S(17), t0), valu('v_mul_u32_u24', t0, 1152, t0),
          valu('v_lshrrev_b32', t1, 4, lane), valu('v_lshl_add_u32', t0, t1, 4, t0), salu('s_lshl_b32', S(18), S(12), 6), valu('v_add_u32', t0, S(18), t0),
          valu('v_lshlrev_b32', t1, 4, lane), salu('s_movk_i32', S(19), 18432)]
    SX, SO, SP = S(20, 4), S(24, 4), S(28, 4)
    L += [raw('s_waitcnt lgkmcnt(0)', 'wait')]
    L += srd_set(SX, S(4, 2), 2048*576*2) + srd_set(SO, S(6, 2), 2048*576*2) + srd_set(SP, S(8, 2), 0x10000000)
    D = lambda s, aa: V(48 + 8*s + 4*aa, 4)
    for s in range(16):
        L.append(salu('s_add_u32', S(32 + s), S(15), 147456*s) if s else salu('s_mov_b32', S(32), S(15)))
    order = list(range(16))
    for s in order:
        for aa in range(2): L.append(bufload(D(s, aa), t1, SP, S(32 + s), 1024*aa))
    XR = [V(4, 4), V(8, 4)]
    for t in range(2): L.append(bufload(XR[t], t0, SX, S(19) if t else 0, 0))
    k10, k01 = S(48), S(49)
    L += [salu('s_mov_b32', k10, 0x00003f80), salu('s_mov_b32', k01, 0x3f800000)]
    ACC = lambda kind, aa, t, j: V(12 + 16*kind + 8*aa + 4*t + j)
    for s in order:
        kind = s >> 3
        for aa in range(2):
            d = D(s, aa)
            for r in range(4):
                t, jj = r >> 1, 2*(r & 1)
                for hi in range(2):
                    a = ACC(kind, aa, t, jj + hi)
                    L.append(valu('v_dot2_f32_bf16', a, d[r], k01 if hi else k10, 0 if (s & 7) == 0 else a))
    tmp = [V(48 + i) for i in range(16)]
    idx = [(aa, t, j) for aa in range(2) for t in range(2) for j in range(4)]
    for n, (aa, t, j) in enumerate(idx): L.append(valu('v_mul_f32', tmp[n], f2u(-LOG2E), ACC(1, aa, t, j)))
    for n in range(16): L.append(valu('v_exp_f32', tmp[n], tmp[n], trans=True))
    for n in range(16): L.append(valu('v_add_f32', tmp[n], 1.0, tmp[n]))
    for n in range(16): L.append(valu('v_rcp_f32', tmp[n], tmp[n], trans=True))
    for n, (aa, t, j) in enumerate(idx): L.append(valu('v_mul_f32', ACC(0, aa, t, j), ACC(0, aa, t, j), ACC(1, aa, t, j)))
    for n, (aa, t, j) in enumerate(idx): L.append(valu('v_mul_f32', ACC(0, aa, t, j), ACC(0, aa, t, j), tmp[n]))
    for t in range(2):
        for j in range(4): L.append(swap('v_permlane32_swap_b32', ACC(0, 0, t, j), ACC(0, 1, t, j)))
    for t in range(2):
        for j in range(4): L.append(swap('v_permlane16_swap_b32', ACC(0, 0, t, j), ACC(0, 1, t, j)))
    mask = S(50); L.append(salu('s_mov_b32', mask, 0xffff0000))
    for t in range(2):
        x = XR[t]; y = [ACC(0, 0, t, j) for j in range(4)] + [ACC(0, 1, t, j) for j in range(4)]
        u_ = [V(64 + 8*t + i) for i in range(8)]
        for r in range(4):
            L += [valu('v_lshlrev_b32', u_[2*r], 16, x[r]), valu('v_and_b32', u_[2*r+1], mask, x[r])]
        for i in range(8): L.append(valu('v_add_f32', u_[i], u_[i], y[i]))
        o = V(80 + 4*t, 4)
        for r in range(4): L.append(valu('v_cvt_pk_bf16_f32', o[r], u_[2*r], u_[2*r+1]))
        L.append(bufstore(o, t0, SO, S(19) if t else 0, 0))
    L += [label('L_end2'), raw('s_endpgm', 'branch')]
    return L
```

```python
import sys, os
sys.path.insert(0, os.path.dirname(os.path.abspath(__file__)))
from slow import *
import roles
NAME = 'recurrent_scan__sliding_block_cached__geglu_ffn__prompt'
HEAD = open('cdna_kernels/%s.s.ref' % NAME).read().split('; Override launch')[0]
def kd(name, vg, acc, sg=102):
    return '''.section .rodata,"a"
.p2align 6
.amdhsa_kernel %s
  .amdhsa_next_free_vgpr %d
  .amdhsa_next_free_sgpr %d
  .amdhsa_accum_offset %d
  .amdhsa_group_segment_fixed_size 0
  .amdhsa_kernarg_size 96
  .amdhsa_user_sgpr_count 2
  .amdhsa_user_sgpr_kernarg_segment_ptr 1
  .amdhsa_system_sgpr_workgroup_id_x 1
  .amdhsa_float_denorm_mode_32 3
.end_amdhsa_kernel
.text
''' % (name, vg, sg, acc)
def finalize(L, st):
    L = pass_waits(L, stats=st); return pass_hazards(L, stats=st)
def generate(path, verbose=True):
    k1 = NAME + '_kernel'; k2 = 'reduce_kernel'
    pro = common_prologue() + [scmp('s_cmp_lg_u32', sROLE, 0), raw('s_cbranch_scc1 L_ffn', 'branch')]
    att, Ra = build_attention(); ffn, Rf = build_ffn()
    A_ = finalize(pro + att, Ra.stats); F_ = finalize(pro + ffn, Rf.stats)
    verify_ring(A_, Ra); verify_ring(F_, Rf)
    npro = [i for i, x in enumerate(A_) if x.text == 'L_att:'][0]
    nproF = [i for i, x in enumerate(F_) if x.text == 'L_ffn:'][0]
    assert [x.text for x in A_[:npro]] == [x.text for x in F_[:nproF]]
    slow = []
    for p in range(2): slow += pass_hazards(slow_path(p))
    K2 = finalize(build_k2(k2), {})
    out = [HEAD.rstrip(),
           '; @launch kernel=%s grid=(256,1,1) block=(256,1,1) lds=131072' % k1,
           '; @launch kernel=%s grid=(288,1,1) block=(256,1,1) lds=0' % k2,
           '.amdgcn_target "amdgcn-amd-amdhsa--gfx950"', '\n'.join(MACROS), '.text',
           '.globl %s' % k1, '.p2align 8', '.type %s,@function' % k1, '%s:' % k1,
           emit(A_), 'L_att_end:', emit(slow), '.p2align 6', emit(F_[nproF:]), 'L_ffn_end:', 's_endpgm',
           '.globl %s' % k2, '.p2align 8', '.type %s,@function' % k2, '%s:' % k2, emit(K2),
           kd(k1, 512, 256), kd(k2, 176, 176, 64)]
    open(path, 'w').write('\n'.join(out) + '\n')
    if verbose:
        print('att', Ra.stats, len(A_)); print('ffn', Rf.stats, len(F_)); print('bytes', os.path.getsize(path))
if __name__ == '__main__':
    generate(sys.argv[1] if len(sys.argv) > 1 else 'cdna_kernels/%s.s' % NAME)
```

```python
import sys
def header():
    return ['.amdgcn_target "amdgcn-amd-amdhsa--gfx950"', '.text']
def kd(name, lds=0):
    return ['.section .rodata,"a"', '.p2align 6', '.amdhsa_kernel %s' % name,
      '  .amdhsa_next_free_vgpr 512', '  .amdhsa_next_free_sgpr 102', '  .amdhsa_accum_offset 256',
      '  .amdhsa_group_segment_fixed_size 0', '  .amdhsa_kernarg_size 16', '  .amdhsa_user_sgpr_count 2',
      '  .amdhsa_user_sgpr_kernarg_segment_ptr 1', '  .amdhsa_system_sgpr_workgroup_id_x 1', '.end_amdhsa_kernel', '.text']

def prologue(name):
    L = ['.globl %s' % name, '.p2align 8', '.type %s,@function' % name, '%s:' % name]
    L += ['s_load_dwordx2 s[4:5], s[0:1], 0', 's_load_dwordx2 s[6:7], s[0:1], 8', 's_waitcnt lgkmcnt(0)',
          's_mov_b32 s8, s4', 's_mov_b32 s9, s5', 's_mov_b32 s10, 0x4000000', 's_mov_b32 s11, 0x20000',
          'v_and_b32 v1, 63, v0', 'v_lshrrev_b32 v2, 6, v0', 's_nop 0', 'v_readfirstlane_b32 s3, v2',
          'v_lshlrev_b32 v3, 4, v0']
    for i in range(40):
        L += ['global_load_dwordx4 v[8:11], v3, s[4:5]', 's_waitcnt vmcnt(0)', 'ds_write_b128 v3, v[8:11]', 'v_add_u32 v3, 4096, v3']
    L += ['s_waitcnt lgkmcnt(0)', 's_barrier']
    L += ['v_lshlrev_b32 v3, 4, v0']
    for r in range(16, 256, 4):
        L += ['global_load_dwordx4 v[%d:%d], v3, s[4:5]' % (r, r+3), 'v_add_u32 v3, 4096, v3']
        if (r//4) % 8 == 7: L += ['s_waitcnt vmcnt(0)']
    L += ['s_waitcnt vmcnt(0)']
    for r in range(256):
        L += ['v_accvgpr_write_b32 a%d, 0' % r]
    L += ['v_and_b32 v5, 15, v1', 'v_lshrrev_b32 v6, 2, v5', 'v_lshlrev_b32 v6, 6, v6',
          'v_and_b32 v5, 3, v5', 'v_lshlrev_b32 v5, 3, v5', 'v_add_u32 v4, v5, v6',
          'v_bfe_u32 v5, v1, 4, 1', 'v_lshlrev_b32 v5, 5, v5', 'v_add_u32 v4, v4, v5',
          'v_lshrrev_b32 v5, 5, v1', 'v_lshlrev_b32 v5, 8, v5', 'v_add_u32 v4, v4, v5']
    L += ['v_lshlrev_b32 v5, 4, v1', 'v_lshlrev_b32 v6, 4, v1', 's_lshl_b32 s12, s3, 12', 'v_add_u32 v6, s12, v6',
          's_and_b32 s13, s2, 7', 's_lshl_b32 s13, s13, 21', 's_mov_b32 s14, s13', 's_lshl_b32 s15, s3, 12', 's_mov_b32 m0, s15',
          's_mov_b32 s16, 0']
    return L
def epilogue():
    L = ['s_waitcnt vmcnt(0) lgkmcnt(0)', 's_memtime s[24:25]', 's_memrealtime s[26:27]', 's_waitcnt lgkmcnt(0)',
         's_sub_u32 s24, s24, s20', 's_subb_u32 s25, s25, s21', 's_sub_u32 s26, s26, s22', 's_subb_u32 s27, s27, s23',
         'v_mov_b32 v8, s24', 'v_mov_b32 v9, s26', 'v_mov_b32 v10, s22', 'v_mov_b32 v11, s23',
         's_lshl_b32 s12, s2, 2', 's_add_u32 s12, s12, s3', 's_lshl_b32 s12, s12, 4', 'v_mov_b32 v3, s12',
         'v_cmp_eq_u32 vcc, 0, v1', 's_and_saveexec_b64 s[30:31], vcc', 'global_store_dwordx4 v3, v[8:11], s[6:7]', 's_waitcnt vmcnt(0)', 's_endpgm']
    return L
def timed(name, body, iters):
    L = prologue(name)
    L += ['s_waitcnt vmcnt(0) lgkmcnt(0)', 's_barrier', 's_memtime s[20:21]', 's_memrealtime s[22:23]', 's_waitcnt lgkmcnt(0)', 's_mov_b32 s17, %d' % iters]
    L += ['.p2align 6', name + '_loop:']
    L += body
    L += ['s_sub_u32 s17, s17, 1', 's_cmp_lg_u32 s17, 0', 's_cbranch_scc1 %s_loop' % name]
    L += epilogue()
    L += kd(name)
    return L

def mfma(acc, a, b):
    return 'v_mfma_f32_32x32x16_bf16 a[%d:%d], v[%d:%d], v[%d:%d], a[%d:%d]' % (acc, acc+15, a, a+3, b, b+3, acc, acc+15)
def mfma16(acc, a, b):
    return 'v_mfma_f32_16x16x32_bf16 a[%d:%d], v[%d:%d], v[%d:%d], a[%d:%d]' % (acc, acc+3, a, a+3, b, b+3, acc, acc+3)

def body(n=16, reads='none', dma=False, barrier=False, valu=0, exps=0, nacc=16, dist=4, m16=False, waitevery=1, dmaevery=4, breg=True):
    L = []
    NS = 8
    for i in range(n):
        st = 16 + 4*(i % NS)
        pf = 16 + 4*((i + dist) % NS)
        off = ((i + dist) % n) * 1024
        if reads == 'tr':
            if i % waitevery == 0:
                L.append('s_waitcnt lgkmcnt(%d)' % (2*(dist-waitevery+1) - 0))
        elif reads == 'b128':
            if i % waitevery == 0:
                L.append('s_waitcnt lgkmcnt(%d)' % (dist-waitevery+1))
        b = 64 + 4*(i % 32)
        if m16:
            L.append(mfma16(8*(i % nacc), st, b));
            pre = []
        else:
            L.append(mfma(16*(i % nacc), st, b))
        fill = []
        if reads == 'tr':
            fill.append('ds_read_b64_tr_b16 v[%d:%d], v4 offset:%d' % (pf, pf+1, off))
            fill.append('ds_read_b64_tr_b16 v[%d:%d], v4 offset:%d' % (pf+2, pf+3, off+512))
        elif reads == 'b128':
            fill.append('ds_read_b128 v[%d:%d], v5 offset:%d' % (pf, pf+3, off))
        if m16:
            L += fill[:1] ; L.append(mfma16(8*(i % nacc)+4, st, b+4)); L += fill[1:]; fill = []
        L += fill
        for k in range(exps):
            L.append('v_exp_f32 v%d, v%d' % (200 + (i*exps+k) % 16, 220 + k))
        for k in range(valu):
            L.append('v_fma_f32 v%d, v%d, v%d, v%d' % (230 + (i*valu+k) % 16, 220+k, 221+k, 222+k))
        if dma and i % dmaevery == dmaevery-1:
            j = (i//dmaevery)
            if j % 4 == 0:
                L.append('s_add_u32 s14, s14, 16384'); L.append('s_and_b32 s14, s14, 0x1fffff' if False else 's_nop 0')
            L.append('buffer_load_dwordx4 v6, s[8:11], s14 offen offset:%d lds' % (1024*(j % 4)))
        if barrier and i == n-2:
            L.append('s_waitcnt vmcnt(%d)' % (8 if dma else 0))
            L.append('s_barrier')
            if dma:
                L += ['s_add_u32 s16, s16, 16384', 's_and_b32 s16, s16, 0xffff', 's_add_u32 s15, s16, 0x10000', 's_lshl_b32 s18, s3, 12', 's_add_u32 s15, s15, s18', 's_mov_b32 m0, s15'] if False else ['s_xor_b32 m0, m0, 0x4000']
    return L

K = {}
K['bare'] = body()
K['bare16'] = body(m16=True)
K['tr'] = body(reads='tr')
K['tr_w2'] = body(reads='tr', waitevery=2)
K['b128'] = body(reads='b128')
K['tr16'] = body(reads='tr', m16=True)
K['tr_bar'] = body(reads='tr', barrier=True)
K['tr_dma'] = body(reads='tr', dma=True)
K['tr_dma_bar'] = body(reads='tr', dma=True, barrier=True)
K['tr_dma_bar_v1'] = body(reads='tr', dma=True, barrier=True, valu=1)
K['tr_dma_bar_v2'] = body(reads='tr', dma=True, barrier=True, valu=2)
K['tr_dma_bar_v3'] = body(reads='tr', dma=True, barrier=True, valu=3)
K['tr_w2_dma_bar_v2'] = body(reads='tr', dma=True, barrier=True, valu=2, waitevery=2)
K['tr_w2_dma_bar_v3'] = body(reads='tr', dma=True, barrier=True, valu=3, waitevery=2)
K['tr_w2_dma_bar_e1v1'] = body(reads='tr', dma=True, barrier=True, valu=1, exps=1, waitevery=2)
K['b128_dma_bar_e1v2'] = body(reads='b128', dma=True, barrier=True, valu=2, exps=1, waitevery=2)
K['b128_dma_bar_e2v1'] = body(reads='b128', dma=True, barrier=True, valu=1, exps=2, waitevery=2)
K['v4'] = body(valu=4)
K['v5'] = body(valu=5)
K['v6'] = body(valu=6)
K['e2v2'] = body(valu=2, exps=2)
K['e3'] = body(exps=3)
if __name__ == '__main__':
    L = header()
    for k, b in K.items():
        L += timed('mb_' + k, b, int(sys.argv[1]) if len(sys.argv) > 1 else 150)
    open('mb1.s', 'w').write('\n'.join(L) + '\n')
    open('mb1_names.txt', 'w').write('\n'.join('mb_' + k for k in K))
```

```python
from mb1 import header, kd
def kern(name, kind):
    L = ['.globl %s' % name, '.p2align 8', '.type %s,@function' % name, '%s:' % name,
         's_memrealtime s[22:23]', 's_load_dwordx2 s[4:5], s[0:1], 0', 's_load_dwordx2 s[6:7], s[0:1], 8',
         'v_and_b32 v1, 63, v0', 'v_lshrrev_b32 v2, 6, v0', 's_nop 0', 'v_readfirstlane_b32 s3, v2', 's_nop 3',
         's_lshr_b32 s13, s2, 3', 's_and_b32 s13, s13, 15', 's_lshl_b32 s13, s13, 7', 's_lshl_b32 s14, s3, 5', 's_add_u32 s13, s13, s14',
         's_waitcnt lgkmcnt(0)', 's_mov_b32 s8, s4', 's_mov_b32 s9, s5', 's_mov_b32 s10, 0x240000', 's_mov_b32 s11, 0x20000', 's_movk_i32 s15, 18432']
    if kind == 'frag':
        L += ['v_and_b32 v6, 15, v1', 'v_add_u32 v6, s13, v6', 'v_mul_u32_u24 v6, 1152, v6', 'v_lshrrev_b32 v7, 4, v1', 'v_lshl_add_u32 v6, v7, 4, v6']
        for ks in range(18):
            for t in range(2): L.append('buffer_load_dwordx4 v[%d:%d], v6, s[8:11], %s offen offset:%d' % (16+8*ks+4*t, 19+8*ks+4*t, 's15' if t else '0', 64*ks))
    if kind == 'frag8':
        L += ['v_lshrrev_b32 v6, 3, v1', 'v_add_u32 v6, s13, v6', 'v_mul_u32_u24 v6, 1152, v6', 'v_and_b32 v7, 7, v1', 'v_lshl_add_u32 v6, v7, 4, v6', 's_mov_b32 s16, 0']
        for rg in range(4):
            for c in range(9): L.append('buffer_load_dwordx4 v[%d:%d], v6, s[8:11], s16 offen offset:%d' % (16+4*(9*rg+c), 19+4*(9*rg+c), 128*c))
            L.append('s_add_u32 s16, s16, 9216')
    if kind in ('lin', 'dma'):
        L += ['s_mul_i32 s16, s13, 1152', 'v_lshlrev_b32 v6, 4, v1', 's_mul_i32 s17, s3, 36864']
        for j in range(36):
            if kind == 'lin': L.append('buffer_load_dwordx4 v[%d:%d], v6, s[8:11], s16 offen' % (16+4*j, 19+4*j))
            else: L += ['s_mov_b32 m0, s17', 's_nop 0', 'buffer_load_dwordx4 v6, s[8:11], s16 offen lds', 's_add_u32 s17, s17, 1024']
            L.append('s_add_u32 s16, s16, 1024')
    L += ['s_memrealtime s[20:21]', 's_waitcnt vmcnt(0) lgkmcnt(0)', 's_memrealtime s[26:27]', 's_waitcnt lgkmcnt(0)',
          's_sub_u32 s24, s20, s22', 's_sub_u32 s26, s26, s22', 'v_mov_b32 v8, s24', 'v_mov_b32 v9, s26', 'v_mov_b32 v10, s22', 'v_mov_b32 v11, s23',
          's_lshl_b32 s12, s2, 2', 's_add_u32 s12, s12, s3', 's_lshl_b32 s12, s12, 4', 'v_mov_b32 v3, s12',
          'v_cmp_eq_u32 vcc, 0, v1', 's_and_saveexec_b64 s[30:31], vcc', 'global_store_dwordx4 v3, v[8:11], s[6:7]', 's_waitcnt vmcnt(0)', 's_endpgm']
    return L + kd(name)
L = header(); names = []
for k in ('frag', 'frag8', 'lin', 'dma'):
    L += kern('mb_' + k, k); names.append('mb_' + k)
open('mb11.s', 'w').write('\n'.join(L) + '\n'); open('mb11_names.txt', 'w').write('\n'.join(names))
```
